```python
import torch

def _softmax(x, axis=-1):
    return torch.softmax(x, dim=axis)
def _gelu(x):
    return torch.nn.functional.gelu(x, approximate="tanh")
def _silu(x):
    return torch.nn.functional.silu(x)
def _sigmoid(x):
    return torch.sigmoid(x)
def _layernorm(x, axis=-1, eps=1e-5):
    m = x.mean(dim=axis, keepdim=True)
    v = x.var(dim=axis, keepdim=True, unbiased=False)
    return (x - m) / torch.sqrt(v + eps)
def _scatter_add(tgt, idx, src, axis=0):
    return tgt.clone().index_add_(axis, idx, src)
def _segment_sum(src, seg, n):
    out = torch.zeros((n,) + src.shape[1:], dtype=src.dtype)
    return out.index_add_(0, seg, src)
def _pad(x, pw):
    flat = tuple(v for pair in reversed(pw) for v in pair)
    return torch.nn.functional.pad(x, flat)

kernel_name = 'sequential_preLN__compressed_kv_cla__dense_activation_silu__prompt'

def setup_inputs():

    _w = (lambda a: (lambda t: t.to(torch.bfloat16) if t.is_floating_point() else t)(torch.as_tensor(a)))
    def _A_setup():
        B, H, Sq, Sk, D, M = 1, 16, 2048, 2048, 256, 448
        Dc = 4 * D
        return {
            "x": _w((lambda *s: torch.randn(*s, dtype=torch.bfloat16) * 0.05)(B, Sq, M)),
            "c_kv": _w((lambda *s: torch.randn(*s, dtype=torch.bfloat16) * 0.4)(B, Sk, Dc)),
            "w_q": _w((lambda *s: torch.randn(*s, dtype=torch.bfloat16) * 1.6)(M, H, D) * (M ** -0.5)),
            "w_uk": _w((lambda *s: torch.randn(*s, dtype=torch.bfloat16) * 1.6)(Dc, H, D) * (Dc ** -0.5)),
            "w_uv": _w((lambda *s: torch.randn(*s, dtype=torch.bfloat16) * 0.4)(Dc, H, D) * (Dc ** -0.5)),
            "w_o": _w((lambda *s: torch.randn(*s, dtype=torch.bfloat16) * 0.4)(H, D, M) * ((H * D) ** -0.5)),
        }
    _A_in = _A_setup()

    def _B_setup():
        B, S, D, F = 1, 2048, 448, 1792
        return {
            "x": _w((lambda *s: torch.randn(*s, dtype=torch.bfloat16) * 0.05)(B, S, D)),
            "w1": _w((lambda *s: torch.randn(*s, dtype=torch.bfloat16) * 0.8)(D, F) * (D ** -0.5)),
            "w2": _w((lambda *s: torch.randn(*s, dtype=torch.bfloat16) * 0.1)(F, D) * (F ** -0.5)),
        }
    _B_in = _B_setup()

    return {
        "A_x": _A_in["x"],
        "A_c_kv": _A_in["c_kv"],
        "A_w_q": _A_in["w_q"],
        "A_w_uk": _A_in["w_uk"],
        "A_w_uv": _A_in["w_uv"],
        "A_w_o": _A_in["w_o"],
        "B_x": _B_in["x"],
        "B_w1": _B_in["w1"],
        "B_w2": _B_in["w2"],
    }

def reference(A_x, A_c_kv, A_w_q, A_w_uk, A_w_uv, A_w_o, B_x, B_w1, B_w2):
    def _A_ref(x, c_kv, w_q, w_uk, w_uv, w_o):
        B, Sq, M = x.shape[0], x.shape[1], x.shape[2]
        Sk = c_kv.shape[1]
        H, D = w_q.shape[1], w_q.shape[2]
        q = torch.einsum("bqm,mhd->bhqd", x, w_q)
        k = torch.einsum("bkc,chd->bhkd", c_kv, w_uk)
        v = torch.einsum("bkc,chd->bhkd", c_kv, w_uv)
        scores = torch.einsum("bhqd,bhkd->bhqk", q, k) * (D ** -0.5)
        off = Sk - Sq
        qi = torch.arange(Sq)[:, None]
        kj = torch.arange(Sk)[None, :]
        cmask = kj <= (qi + off)
        scores = torch.where(cmask[None, None], scores, -1e9)
        p = _softmax(scores, axis=-1)
        ctx = torch.einsum("bhqk,bhkd->bhqd", p, v)
        return torch.einsum("bhqd,hdm->bqm", ctx, w_o)

    def _B_ref(x, w1, w2):
        h = torch.einsum("bsd,df->bsf", x, w1)
        h = _silu(h)
        out = torch.einsum("bsf,fd->bsd", h, w2)
        return out

    x = A_x
    h = x + _A_ref(_layernorm(x, axis=-1), A_c_kv, A_w_q, A_w_uk, A_w_uv, A_w_o)
    h2 = h + _B_ref(_layernorm(h, axis=-1), B_w1, B_w2)
    return h2
```

```python
import re


def v(i, n=1):
    return f"v{i}" if n == 1 else f"v[{i}:{i + n - 1}]"


def a(i, n=1):
    return f"a{i}" if n == 1 else f"a[{i}:{i + n - 1}]"


def s(i, n=1):
    return f"s{i}" if n == 1 else f"s[{i}:{i + n - 1}]"


class R:
    def __init__(self, f, i):
        self.f, self.i = f, i

    def __call__(self, off=0, n=1):
        return (v if self.f == "v" else a)(self.i + off, n)


class Kern:
    def __init__(self, name):
        self.name = name
        self.lines = []
        self.nlabel = 0

    def e(self, *ls):
        for l in ls:
            if isinstance(l, (list, tuple)):
                self.e(*l)
            else:
                self.lines.append(l)

    def label(self, base):
        self.nlabel += 1
        return f"L_{self.name}_{base}_{self.nlabel}"

    def text(self):
        out = []
        for l in self.lines:
            if l.endswith(":") or l.startswith("."):
                out.append(l)
            else:
                out.append("    " + l)
        return "\n".join(out) + "\n"


def interleave(main, fill, per=None, start=0):
    out = []
    n = len(main)
    fill = list(fill)
    if per is None:
        slots = n - start
        cnt = [0] * n
        for j in range(len(fill)):
            cnt[start + (j * slots) // max(len(fill), 1)] += 1
    else:
        cnt = [per(i) if callable(per) else per[i] for i in range(n)]
    k = 0
    for i, m in enumerate(main):
        out.append(m)
        for _ in range(cnt[i]):
            if k < len(fill):
                out.append(fill[k])
                k += 1
    out.extend(fill[k:])
    return out


_REG = re.compile(r"^(-|\|)?(abs\()?([vas])(?:(\d+)|\[(\d+):(\d+)\])\)?\|?$")
TRANS = ("v_exp_f32", "v_log_f32", "v_rcp_f32", "v_rsq_f32", "v_sqrt_f32", "v_sin_f32", "v_cos_f32")


def regs_of(tok):
    tok = tok.strip()
    if tok == "vcc":
        return {("s", 106), ("s", 107)}
    if tok == "exec":
        return {("s", 126), ("s", 127)}
    if tok == "m0":
        return {("s", 124)}
    m = _REG.match(tok)
    if not m:
        return set()
    f = m.group(3)
    if m.group(4) is not None:
        return {(f, int(m.group(4)))}
    return {(f, i) for i in range(int(m.group(5)), int(m.group(6)) + 1)}


def split_ops(sx):
    ops, depth, cur = [], 0, ""
    for ch in sx:
        if ch in "[(":
            depth += 1
        if ch in "])":
            depth -= 1
        if ch == "," and depth == 0:
            ops.append(cur.strip())
            cur = ""
        else:
            cur += ch
    if cur.strip():
        ops.append(cur.strip())
    return ops


class Ins:
    def __init__(self, text):
        self.text = text
        t = text.split(";")[0].strip()
        parts = t.split(None, 1)
        self.mn = parts[0]
        rest = parts[1] if len(parts) > 1 else ""
        ops = split_ops(rest)
        mods = []
        clean = []
        for o in ops:
            w = o.split()
            clean.append(w[0])
            mods += w[1:]
        self.ops, self.mods = clean, mods
        mn = self.mn
        self.kind = "other"
        self.w, self.r = set(), set()
        self.srcc = set()
        self.srcab = set()
        self.states = 1
        self.dpp = any(m.startswith(("quad_perm", "row_", "wave_")) for m in mods)
        O = [regs_of(o) for o in clean]
        if mn == "s_nop":
            self.states = int(clean[0], 0) + 1
            self.kind = "salu"
        elif mn.startswith("v_mfma"):
            self.kind = "mfma"
            self.w = O[0]
            self.srcab = O[1] | O[2]
            self.srcc = O[3]
            self.r = self.srcab | self.srcc
            self.passes = 8 if "32x32x16" in mn else 4 if "16x16x32" in mn else None
            assert self.passes, mn
        elif mn.startswith("v_"):
            self.kind = "valu"
            if mn.startswith("v_permlane") and "swap" in mn:
                self.w = O[0] | O[1]
                self.r = O[0] | O[1]
            elif mn.startswith(("v_add_co", "v_sub_co", "v_addc_co", "v_subb_co", "v_subrev_co")):
                self.w = O[0] | O[1]
                self.r = set().union(*O[2:])
            else:
                self.w = O[0]
                self.r = set().union(*O[1:]) if len(O) > 1 else set()
                if mn.startswith(("v_fmac", "v_dot2c", "v_pk_fmac", "v_writelane")):
                    self.r |= O[0]
        elif mn.startswith("ds_"):
            self.kind = "ds"
            if mn.startswith(("ds_read", "ds_bpermute", "ds_permute", "ds_swizzle")):
                self.w = O[0]
                self.r = set().union(*O[1:])
            else:
                self.r = set().union(*O)
        elif mn.startswith(("buffer_", "global_")):
            self.kind = "vmem"
            if mn in ("buffer_wbl2", "buffer_inv"):
                pass
            elif "load" in mn and "lds" not in mods and "_lds_" not in mn:
                self.w = O[0]
                self.r = set().union(*O[1:])
            elif "atomic" in mn and "sc0" in mods:
                self.w = O[0]
                self.r = set().union(*O)
            else:
                self.r = set().union(*O)
                if "lds" in mods or "_lds_" in mn:
                    self.r |= {("s", 124)}
                    self.ldsdma = True
            self.widestore = ("store_dwordx4" in mn or "store_dwordx3" in mn)
            if self.widestore:
                self.sdata = O[0] if mn.startswith("buffer_") else O[1]
        elif mn.startswith("s_"):
            self.kind = "salu"
            if mn.startswith(("s_cmp", "s_waitcnt", "s_barrier", "s_branch", "s_cbranch", "s_setprio",
                              "s_endpgm", "s_sleep", "s_bitcmp")):
                self.r = set().union(*O) if O else set()
            else:
                self.w = O[0] if O else set()
                self.r = set().union(*O[1:]) if len(O) > 1 else set()
                if "saveexec" in mn:
                    self.w |= {("s", 126), ("s", 127)}
        else:
            raise ValueError("unknown instruction " + text)


def need(p, c):
    n = 0
    why = ""

    def up(k, w):
        nonlocal n, why
        if k > n:
            n, why = k, w

    pv = {x for x in p.w if x[0] in "va"}
    ps = {x for x in p.w if x[0] == "s"}
    if p.kind == "valu":
        if c.kind == "mfma" and pv & c.r:
            up(2, "valu->mfma src")
        if c.kind == "vmem" and ps & c.r:
            up(5, "valu sgpr->vmem")
        if c.kind == "valu" and ps & c.r:
            up(4 if c.mn.startswith(("v_readlane", "v_writelane")) else 2, "valu sgpr->valu")
        if c.kind == "salu" and ps & c.r:
            up(1, "valu sgpr->salu (pad)")
        if c.kind == "valu" and c.mn.startswith(("v_readlane", "v_readfirstlane")) and pv & c.r:
            up(1, "valu->readlane")
        if c.kind == "valu" and c.dpp and pv & c.r:
            up(2, "valu->dpp")
        if c.kind == "valu" and c.mn.startswith("v_permlane") and pv & c.r:
            up(2, "valu->permlane")
        if p.mn.replace("_e32", "") in TRANS and c.kind in ("valu",) and pv & c.r and \
                c.mn.replace("_e32", "") not in TRANS:
            up(1, "trans->valu")
        if p.mn.replace("_e32", "") in TRANS and c.kind in ("ds", "vmem") and pv & c.r:
            up(1, "trans->mem(pad)")
    if p.kind == "mfma":
        P = p.passes
        big = {4: 8, 8: 12}[P]
        if c.kind == "mfma":
            if p.w & c.srcab:
                up(big, "mfma D->mfma A/B")
            if p.w & c.srcc:
                if not (p.w == c.srcc and p.passes == c.passes):
                    up({4: 6, 8: 10}[P], "mfma D->mfma C overlap")
            elif p.w & c.w:
                up({4: 6, 8: 10}[P], "mfma D->mfma D waw")
        elif c.kind in ("valu", "ds", "vmem"):
            if p.w & (c.r | c.w):
                up(big, "mfma D->valu/mem")
        if c.kind == "valu" and p.srcc & c.w:
            up({4: 3, 8: 7}[P], "mfma srcC WAR")
        if c.kind in ("ds", "vmem") and p.srcc & c.w:
            up({4: 3, 8: 7}[P], "mfma srcC WAR (load)")
    if p.kind == "salu" and ("s", 124) in p.w and getattr(c, "ldsdma", False):
        up(1, "m0->ldsdma")
    if p.kind == "vmem" and getattr(p, "widestore", False):
        if c.kind == "valu" and p.sdata & c.w:
            up(2, "store data WAR valu")
        elif c.kind != "valu" and p.sdata & c.w:
            up(1, "store data WAR")
    return n, why


def check_seq(seq, errs, tag=""):
    for i, c in enumerate(seq):
        dist = 0
        for j in range(i - 1, max(-1, i - 24), -1):
            p = seq[j]
            n, why = need(p, c)
            if n > dist:
                errs.append(f"{tag} hazard[{why}] need {n} have {dist}: '{p.text}' -> '{c.text}'")
            dist += p.states
            if dist >= 20:
                break


def check(lines):
    ins, labels = [], {}
    for l in lines:
        t = l.split(";")[0].strip()
        if not t or t.startswith("."):
            continue
        if t.endswith(":"):
            labels[t[:-1]] = len(ins)
            continue
        ins.append(Ins(t))
    errs = []
    seg = []
    for x in ins:
        seg.append(x)
        if x.mn in ("s_branch", "s_endpgm"):
            check_seq(seg, errs)
            seg = []
    check_seq(seg, errs)
    for i, x in enumerate(ins):
        if x.mn.startswith(("s_branch", "s_cbranch")):
            t = labels[x.ops[0]]
            pre = ins[max(0, i - 24): i + 1]
            for k in range(len(pre) - 2, -1, -1):
                if pre[k].mn in ("s_branch", "s_endpgm"):
                    pre = pre[k + 1:]
                    break
            post = []
            for y in ins[t: t + 24]:
                post.append(y)
                if y.mn in ("s_branch", "s_endpgm"):
                    break
            e2 = []
            check_seq(pre + post, e2, tag=f"[via {x.text}]")
            errs += e2
    seen, out = set(), []
    for e in errs:
        k = e.split("] ", 1)[-1] if e.startswith("[via") else e.strip()
        if k not in seen:
            seen.add(k)
            out.append(e)
    return out


def max_regs(lines):
    mv = ma = ms = -1
    for l in lines:
        t = l.split(";")[0]
        for m in re.finditer(r"\b([vas])(?:(\d+)\b|\[(\d+):(\d+)\])", t):
            hi = int(m.group(2)) if m.group(2) is not None else int(m.group(4))
            if m.group(1) == "v":
                mv = max(mv, hi)
            elif m.group(1) == "a":
                ma = max(ma, hi)
            else:
                ms = max(ms, hi)
    return mv + 1, ma + 1, ms + 1


def finish(kerns, launches, header):
    out = [header.rstrip("\n")]
    for n, g, b, lds in launches:
        out.append(f"; @launch kernel={n} grid=({g},1,1) block=({b},1,1) lds={lds}")
    out.append('.amdgcn_target "amdgcn-amd-amdhsa--gfx950"')
    out.append(".text")
    for k in kerns:
        errs = check(k.lines)
        if errs:
            raise SystemExit(f"hazards in {k.name}:\n" + "\n".join(errs[:40]))
        out.append(f".globl {k.name}")
        out.append(".p2align 8")
        out.append(f".type {k.name},@function")
        out.append(f"{k.name}:")
        out.append(k.text().rstrip("\n"))
    out.append('.section .rodata,"a"')
    for k in kerns:
        nv, na, ns = max_regs(k.lines)
        acc = max(4, (nv + 3) // 4 * 4)
        tot = acc + na if na else nv
        tot = max(tot, getattr(k, "min_vgpr", 0))
        assert nv <= 256 and na <= 256 and ns <= 102, (k.name, nv, na, ns)
        out.append(".p2align 6")
        out.append(f".amdhsa_kernel {k.name}")
        out.append(f"  .amdhsa_next_free_vgpr {tot}")
        out.append(f"  .amdhsa_next_free_sgpr {max(ns, 16)}")
        out.append(f"  .amdhsa_accum_offset {acc}")
        out.append("  .amdhsa_group_segment_fixed_size 0")
        out.append("  .amdhsa_kernarg_size 96")
        out.append("  .amdhsa_user_sgpr_count 2")
        out.append("  .amdhsa_user_sgpr_kernarg_segment_ptr 1")
        out.append("  .amdhsa_system_sgpr_workgroup_id_x 1")
        out.append(".end_amdhsa_kernel")
    return "\n".join(out) + "\n"
```

```python
import sys, importlib
sys.path.insert(0, "gen")
from asmlib import finish
NAME = "sequential_preLN__compressed_kv_cla__dense_activation_silu__prompt"
ref = open(f"cdna_kernels/{NAME}.s.ref").read().split("\n")
header = "\n".join(l for l in ref if l.startswith(";") and "@launch" not in l and "Override" not in l and "grid=ceil" not in l)

def main(out, mods, opts=None):
    ks, ls = [], []
    for m in mods:
        if m.startswith("probe"):
            k, l = importlib.import_module("kprobe").build({"slot": int(m[5:])})
            ks.append(k); ls.append(l)
            continue
        mod = importlib.import_module(m)
        k, l = mod.build(opts.get(m)) if (opts and m in opts) else mod.build()
        ks.append(k); ls.append(l)
    open(out, "w").write(finish(ks, ls, header, instr=bool(opts and opts.get("instr"))))

if __name__ == "__main__":
    out = sys.argv[1] if len(sys.argv) > 1 else f"cdna_kernels/{NAME}.s"
    mods = sys.argv[2].split(",") if len(sys.argv) > 2 else ["k0_ln", "k1_qkv"]
    opts = eval(sys.argv[3]) if len(sys.argv) > 3 else None
    main(out, mods, opts)
```

```python
import re


def v(i, n=1):
    return f"v{i}" if n == 1 else f"v[{i}:{i + n - 1}]"


def a(i, n=1):
    return f"a{i}" if n == 1 else f"a[{i}:{i + n - 1}]"


def s(i, n=1):
    return f"s{i}" if n == 1 else f"s[{i}:{i + n - 1}]"


class R:
    def __init__(self, f, i):
        self.f, self.i = f, i

    def __call__(self, off=0, n=1):
        return (v if self.f == "v" else a)(self.i + off, n)


class Kern:
    def __init__(self, name):
        self.name = name
        self.lines = []
        self.nlabel = 0

    def e(self, *ls):
        for l in ls:
            if isinstance(l, (list, tuple)):
                self.e(*l)
            else:
                self.lines.append(l)

    def label(self, base):
        self.nlabel += 1
        return f"L_{self.name}_{base}_{self.nlabel}"

    def text(self):
        out = []
        for l in self.lines:
            if l.endswith(":") or l.startswith("."):
                out.append(l)
            else:
                out.append("    " + l)
        return "\n".join(out) + "\n"


def interleave(main, fill, per=None, start=0):
    out = []
    n = len(main)
    fill = list(fill)
    if per is None:
        slots = n - start
        cnt = [0] * n
        for j in range(len(fill)):
            cnt[start + (j * slots) // max(len(fill), 1)] += 1
    else:
        cnt = [per(i) if callable(per) else per[i] for i in range(n)]
    k = 0
    for i, m in enumerate(main):
        out.append(m)
        for _ in range(cnt[i]):
            if k < len(fill):
                out.append(fill[k])
                k += 1
    out.extend(fill[k:])
    return out


_REG = re.compile(r"^(-|\|)?(abs\()?([vas])(?:(\d+)|\[(\d+):(\d+)\])\)?\|?$")
TRANS = ("v_exp_f32", "v_log_f32", "v_rcp_f32", "v_rsq_f32", "v_sqrt_f32", "v_sin_f32", "v_cos_f32")


def regs_of(tok):
    tok = tok.strip()
    if tok == "vcc":
        return {("s", 106), ("s", 107)}
    if tok == "exec":
        return {("s", 126), ("s", 127)}
    if tok == "m0":
        return {("s", 124)}
    m = _REG.match(tok)
    if not m:
        return set()
    f = m.group(3)
    if m.group(4) is not None:
        return {(f, int(m.group(4)))}
    return {(f, i) for i in range(int(m.group(5)), int(m.group(6)) + 1)}


def split_ops(sx):
    ops, depth, cur = [], 0, ""
    for ch in sx:
        if ch in "[(":
            depth += 1
        if ch in "])":
            depth -= 1
        if ch == "," and depth == 0:
            ops.append(cur.strip())
            cur = ""
        else:
            cur += ch
    if cur.strip():
        ops.append(cur.strip())
    return ops


class Ins:
    def __init__(self, text):
        self.text = text
        t = text.split(";")[0].strip()
        parts = t.split(None, 1)
        self.mn = parts[0]
        rest = parts[1] if len(parts) > 1 else ""
        ops = split_ops(rest)
        mods = []
        clean = []
        for o in ops:
            w = o.split()
            clean.append(w[0])
            mods += w[1:]
        self.ops, self.mods = clean, mods
        mn = self.mn
        self.kind = "other"
        self.w, self.r = set(), set()
        self.srcc = set()
        self.srcab = set()
        self.states = 1
        self.dpp = any(m.startswith(("quad_perm", "row_", "wave_")) for m in mods)
        O = [regs_of(o) for o in clean]
        if mn == "s_nop":
            self.states = int(clean[0], 0) + 1
            self.kind = "salu"
        elif mn.startswith("v_mfma"):
            self.kind = "mfma"
            self.w = O[0]
            self.srcab = O[1] | O[2]
            self.srcc = O[3]
            self.r = self.srcab | self.srcc
            self.passes = 8 if "32x32x16" in mn else 4 if "16x16x32" in mn else None
            assert self.passes, mn
        elif mn.startswith("v_"):
            self.kind = "valu"
            if mn.startswith("v_permlane") and "swap" in mn:
                self.w = O[0] | O[1]
                self.r = O[0] | O[1]
            elif mn.startswith(("v_add_co", "v_sub_co", "v_addc_co", "v_subb_co", "v_subrev_co")):
                self.w = O[0] | O[1]
                self.r = set().union(*O[2:])
            else:
                self.w = O[0]
                self.r = set().union(*O[1:]) if len(O) > 1 else set()
                if mn.startswith(("v_fmac", "v_dot2c", "v_pk_fmac", "v_writelane")):
                    self.r |= O[0]
        elif mn.startswith("ds_"):
            self.kind = "ds"
            if mn.startswith(("ds_read", "ds_bpermute", "ds_permute", "ds_swizzle")):
                self.w = O[0]
                self.r = set().union(*O[1:])
            else:
                self.r = set().union(*O)
        elif mn.startswith(("buffer_", "global_")):
            self.kind = "vmem"
            if mn in ("buffer_wbl2", "buffer_inv"):
                pass
            elif "load" in mn and "lds" not in mods and "_lds_" not in mn:
                self.w = O[0]
                self.r = set().union(*O[1:])
            elif "atomic" in mn and "sc0" in mods:
                self.w = O[0]
                self.r = set().union(*O)
            else:
                self.r = set().union(*O)
                if "lds" in mods or "_lds_" in mn:
                    self.r |= {("s", 124)}
                    self.ldsdma = True
            self.widestore = ("store_dwordx4" in mn or "store_dwordx3" in mn)
            if self.widestore:
                self.sdata = O[0] if mn.startswith("buffer_") else O[1]
        elif mn.startswith("s_"):
            self.kind = "salu"
            if mn.startswith(("s_cmp", "s_waitcnt", "s_barrier", "s_branch", "s_cbranch", "s_setprio",
                              "s_endpgm", "s_sleep", "s_bitcmp")):
                self.r = set().union(*O) if O else set()
            else:
                self.w = O[0] if O else set()
                self.r = set().union(*O[1:]) if len(O) > 1 else set()
                if "saveexec" in mn:
                    self.w |= {("s", 126), ("s", 127)}
        else:
            raise ValueError("unknown instruction " + text)


def need(p, c):
    n = 0
    why = ""

    def up(k, w):
        nonlocal n, why
        if k > n:
            n, why = k, w

    pv = {x for x in p.w if x[0] in "va"}
    ps = {x for x in p.w if x[0] == "s"}
    if p.kind == "valu":
        if c.kind == "mfma" and pv & c.r:
            up(2, "valu->mfma src")
        if c.kind == "vmem" and ps & c.r:
            up(5, "valu sgpr->vmem")
        if c.kind == "valu" and ps & c.r:
            up(4 if c.mn.startswith(("v_readlane", "v_writelane")) else 2, "valu sgpr->valu")
        if c.kind == "salu" and ps & c.r:
            up(1, "valu sgpr->salu (pad)")
        if c.kind == "valu" and c.mn.startswith(("v_readlane", "v_readfirstlane")) and pv & c.r:
            up(1, "valu->readlane")
        if c.kind == "valu" and c.dpp and pv & c.r:
            up(2, "valu->dpp")
        if c.kind == "valu" and c.mn.startswith("v_permlane") and pv & c.r:
            up(2, "valu->permlane")
        if p.mn.replace("_e64", "") in TRANS and c.kind in ("valu",) and pv & c.r and \
                c.mn.replace("_e64", "") not in TRANS:
            up(1, "trans->valu")
        if p.mn.replace("_e64", "") in TRANS and c.kind in ("ds", "vmem") and pv & c.r:
            up(1, "trans->mem(pad)")
    if p.kind == "mfma":
        P = p.passes
        big = {4: 8, 8: 12}[P]
        if c.kind == "mfma":
            if p.w & c.srcab:
                up(big, "mfma D->mfma A/B")
            if p.w & c.srcc:
                if not (p.w == c.srcc and p.passes == c.passes):
                    up({4: 6, 8: 10}[P], "mfma D->mfma C overlap")
            elif p.w & c.w:
                up({4: 6, 8: 10}[P], "mfma D->mfma D waw")
        elif c.kind in ("valu", "ds", "vmem"):
            if p.w & (c.r | c.w):
                up(big, "mfma D->valu/mem")
        if c.kind == "valu" and p.srcc & c.w:
            up({4: 3, 8: 7}[P], "mfma srcC WAR")
        if c.kind in ("ds", "vmem") and p.srcc & c.w:
            up({4: 3, 8: 7}[P], "mfma srcC WAR (load)")
    if p.kind == "salu" and ("s", 124) in p.w and getattr(c, "ldsdma", False):
        up(1, "m0->ldsdma")
    if p.kind == "vmem" and getattr(p, "widestore", False):
        if c.kind == "valu" and p.sdata & c.w:
            up(2, "store data WAR valu")
        elif c.kind != "valu" and p.sdata & c.w:
            up(1, "store data WAR")
    return n, why


def check_seq(seq, errs, tag=""):
    for i, c in enumerate(seq):
        dist = 0
        for j in range(i - 1, max(-1, i - 24), -1):
            p = seq[j]
            n, why = need(p, c)
            if n > dist:
                errs.append(f"{tag} hazard[{why}] need {n} have {dist}: '{p.text}' -> '{c.text}'")
            dist += p.states
            if dist >= 20:
                break


def check(lines):
    ins, labels = [], {}
    for l in lines:
        t = l.split(";")[0].strip()
        if not t or t.startswith("."):
            continue
        if t.endswith(":"):
            labels[t[:-1]] = len(ins)
            continue
        ins.append(Ins(t))
    errs = []
    seg = []
    for x in ins:
        seg.append(x)
        if x.mn in ("s_branch", "s_endpgm"):
            check_seq(seg, errs)
            seg = []
    check_seq(seg, errs)
    for i, x in enumerate(ins):
        if x.mn.startswith(("s_branch", "s_cbranch")):
            t = labels[x.ops[0]]
            pre = ins[max(0, i - 24): i + 1]
            for k in range(len(pre) - 2, -1, -1):
                if pre[k].mn in ("s_branch", "s_endpgm"):
                    pre = pre[k + 1:]
                    break
            post = []
            for y in ins[t: t + 24]:
                post.append(y)
                if y.mn in ("s_branch", "s_endpgm"):
                    break
            e2 = []
            check_seq(pre + post, e2, tag=f"[via {x.text}]")
            errs += e2
    seen, out = set(), []
    for e in errs:
        k = e.split("] ", 1)[-1] if e.startswith("[via") else e.strip()
        if k not in seen:
            seen.add(k)
            out.append(e)
    return out


def max_regs(lines):
    mv = ma = ms = -1
    for l in lines:
        t = l.split(";")[0]
        for m in re.finditer(r"\b([vas])(?:(\d+)\b|\[(\d+):(\d+)\])", t):
            hi = int(m.group(2)) if m.group(2) is not None else int(m.group(4))
            if m.group(1) == "v":
                mv = max(mv, hi)
            elif m.group(1) == "a":
                ma = max(ma, hi)
            else:
                ms = max(ms, hi)
    return mv + 1, ma + 1, ms + 1


def instrument(k, idx):
    ex = f"L_{k.name}_exitstub"
    body = ["s_memrealtime s[90:91]"] + [f"s_branch {ex}" if l.strip() == "s_endpgm" else l for l in k.lines]
    body += [f"{ex}:", "s_waitcnt vmcnt(0) lgkmcnt(0)", "s_memrealtime s[92:93]",
             "s_load_dwordx2 s[94:95], s[0:1], 88", "s_waitcnt lgkmcnt(0)",
             f"s_add_u32 s96, s94, {102 * (1 << 20) + idx * 4096}", "s_addc_u32 s97, s95, 0", "s_and_b32 s97, s97, 0xffff",
             "s_mov_b32 s98, 4096", "s_mov_b32 s99, 0x00020000", "s_mov_b64 exec, 1",
             "s_lshl_b32 s94, s2, 3", "v_mov_b32 v1, s94", "v_mov_b32 v2, s90", "v_mov_b32 v3, s92", "s_nop 1",
             "buffer_atomic_umin v2, v1, s[96:99], 0 offen", "buffer_atomic_umax v3, v1, s[96:99], 0 offen offset:4",
             "s_endpgm"]
    k.lines = body


_NOWIDE = ("v_readfirstlane", "v_permlane", "v_nop", "v_accvgpr", "v_mfma", "v_cndmask", "v_dot2c")


def align8(k):
    import subprocess, tempfile, os
    for _ in range(12):
        with tempfile.TemporaryDirectory() as d:
            src = os.path.join(d, "a.s")
            body = k.text()
            ext = set(re.findall(r"\b([A-Za-z_][A-Za-z0-9_]*_kernel|L_text_end)\b", body)) - {k.name}
            open(src, "w").write('.amdgcn_target "amdgcn-amd-amdhsa--gfx950"\n.text\n.p2align 8\n' + f"{k.name}:\n" + body +
                                 "".join(f"{x}:\n" for x in ext))
            subprocess.run(["clang", "-x", "assembler", "-target", "amdgcn-amd-amdhsa", "-mcpu=gfx950",
                            "-c", src, "-o", src + ".o"], check=True)
            dis = subprocess.run(["llvm-objdump", "-d", "--mcpu=gfx950", src + ".o"],
                                 capture_output=True, text=True).stdout
        sizes = []
        for l in dis.splitlines():
            m = re.search(r"// ([0-9A-F]{12}): ((?:[0-9A-F]{8} ?)+)", l)
            if m:
                sizes.append((int(m.group(1), 16), 4 * len(m.group(2).split()), l.strip().split()[0]))
        idx = [i for i, l in enumerate(k.lines) if not (l.endswith(":") or l.startswith(".") or not l.strip())]
        j = 0
        info = {}
        for i in idx:
            mn = k.lines[i].split()[0]
            while not sizes[j][2].startswith(mn.replace("_e64", "").replace("_e32", "")):
                assert sizes[j][2] == "s_nop", (k.lines[i], sizes[j])
                j += 1
            info[i] = sizes[j]
            j += 1
        shift = 0
        changed = False
        prev = None
        for n, i in enumerate(idx):
            if prev is not None and any(k.lines[x].startswith(".p2align") for x in range(prev + 1, i)):
                break_ = True
                if shift:
                    break
            ad, sz, _m = info[i]
            if sz == 8 and (ad + shift) % 8 == 4 and prev is not None and prev == i - 1:
                pl = k.lines[prev]
                pm = pl.split()[0]
                if info[prev][1] == 4 and pm.startswith("v_") and not pm.startswith(_NOWIDE) and not pm.endswith("_e64"):
                    k.lines[prev] = pl.replace(pm, pm + "_e64", 1)
                    shift += 4
                    changed = True
            prev = i
        if not changed:
            break


def finish(kerns, launches, header, instr=False):
    if instr:
        for i, k in enumerate(kerns):
            instrument(k, i)
    out = [header.rstrip("\n")]
    for n, g, b, lds in launches:
        out.append(f"; @launch kernel={n} grid=({g},1,1) block=({b},1,1) lds={lds}")
    out.append('.amdgcn_target "amdgcn-amd-amdhsa--gfx950"')
    out.append(".text")
    for k in kerns:
        if not getattr(k, "noalign", False):
            align8(k)
        errs = check(k.lines)
        if errs:
            raise SystemExit(f"hazards in {k.name}:\n" + "\n".join(errs[:40]))
        out.append(f".globl {k.name}")
        out.append(".p2align 8")
        out.append(f".type {k.name},@function")
        out.append(f"{k.name}:")
        out.append(k.text().rstrip("\n"))
    out.append("L_text_end:")
    out.append('.section .rodata,"a"')
    for k in kerns:
        nv, na, ns = max_regs(k.lines)
        acc = max(4, (nv + 3) // 4 * 4)
        tot = acc + na if na else nv
        tot = max(tot, getattr(k, "min_vgpr", 0))
        assert nv <= 256 and na <= 256 and ns <= 102, (k.name, nv, na, ns)
        out.append(".p2align 6")
        out.append(f".amdhsa_kernel {k.name}")
        out.append(f"  .amdhsa_next_free_vgpr {tot}")
        out.append(f"  .amdhsa_next_free_sgpr {max(ns, 16)}")
        out.append(f"  .amdhsa_accum_offset {acc}")
        out.append("  .amdhsa_group_segment_fixed_size 0")
        out.append("  .amdhsa_kernarg_size 96")
        out.append("  .amdhsa_user_sgpr_count 2")
        out.append("  .amdhsa_user_sgpr_kernarg_segment_ptr 1")
        out.append("  .amdhsa_system_sgpr_workgroup_id_x 1")
        out.append(".end_amdhsa_kernel")
    return "\n".join(out) + "\n"
```
